```python
import torch

def _softmax(x, axis=-1):
    return torch.softmax(x, dim=axis)

def _gelu(x):
    return torch.nn.functional.gelu(x, approximate='tanh')

def _silu(x):
    return torch.nn.functional.silu(x)

def _sigmoid(x):
    return torch.sigmoid(x)

def _layernorm(x, axis=-1, eps=1e-05):
    m = x.mean(dim=axis, keepdim=True)
    v = x.var(dim=axis, keepdim=True, unbiased=False)
    return (x - m) / torch.sqrt(v + eps)

def _scatter_add(tgt, idx, src, axis=0):
    return tgt.clone().index_add_(axis, idx, src)

def _segment_sum(src, seg, n):
    out = torch.zeros((n,) + src.shape[1:], dtype=src.dtype)
    return out.index_add_(0, seg, src)

def _pad(x, pw):
    flat = tuple((v for pair in reversed(pw) for v in pair))
    return torch.nn.functional.pad(x, flat)
kernel_name = 'adaLN_cond__mha_block_cached__glu_gated_swiglu__decode'

def setup_inputs():

    _w = lambda a: (lambda t: t.to(torch.bfloat16) if t.is_floating_point() else t)(torch.as_tensor(a))

    def _A_setup():
        B, Sq, D = (1, 1, 512)
        H, Sk, Dh = (32, 4096, 128)
        return {'x': _w((lambda *s: torch.randn(*s, dtype=torch.bfloat16) * 0.05)(B, Sq, D)), 'k_cache': _w((lambda *s: torch.randn(*s, dtype=torch.bfloat16) * 3.2)(B, H, Sk, Dh)), 'v_cache': _w((lambda *s: torch.randn(*s, dtype=torch.bfloat16) * 3.2)(B, H, Sk, Dh)), 'wq': _w((lambda *s: torch.randn(*s, dtype=torch.bfloat16) * 3.2)(D, H * Dh) * D ** (-0.5)), 'wo': _w((lambda *s: torch.randn(*s, dtype=torch.bfloat16) * 3.2)(H * Dh, D) * (H * Dh) ** (-0.5))}
    _A_in = _A_setup()

    def _B_setup():
        B, S, D, F = (1, 1, 512, 1376)
        return {'x': _w((lambda *s: torch.randn(*s, dtype=torch.bfloat16) * 0.05)(B, S, D)), 'w1': _w((lambda *s: torch.randn(*s, dtype=torch.bfloat16) * 1.6)(D, F) * (2.0 / D) ** 0.5), 'w3': _w((lambda *s: torch.randn(*s, dtype=torch.bfloat16) * 1.6)(D, F) * (2.0 / D) ** 0.5), 'w2': _w((lambda *s: torch.randn(*s, dtype=torch.bfloat16) * 1.6)(F, D) * (2.0 / F) ** 0.5)}
    _B_in = _B_setup()
    return {'A_x': _A_in['x'], 'A_k_cache': _A_in['k_cache'], 'A_v_cache': _A_in['v_cache'], 'A_wq': _A_in['wq'], 'A_wo': _A_in['wo'], 'B_x': _B_in['x'], 'B_w1': _B_in['w1'], 'B_w3': _B_in['w3'], 'B_w2': _B_in['w2'], 'c': _w((lambda *s: torch.randn(*s, dtype=torch.bfloat16) * 0.2)(1, 512) * 8.0), 'w_mod': _w((lambda *s: torch.randn(*s, dtype=torch.bfloat16) * 0.2)(512, 6 * 512) * 512 ** (-0.5) * 8.0)}

def reference(A_x, A_k_cache, A_v_cache, A_wq, A_wo, B_x, B_w1, B_w3, B_w2, c, w_mod):

    def _A_ref(x, k_cache, v_cache, wq, wo):
        B, Sq, D = x.shape
        H, Dh = (32, 128)
        q = (lambda x, *d: x.permute(*d))((x @ wq).reshape(B, Sq, H, Dh), 0, 2, 1, 3)
        scores = torch.einsum('bhqd,bhkd->bhqk', q, k_cache) * Dh ** (-0.5)
        p = _softmax(scores, axis=-1)
        o = torch.einsum('bhqk,bhkd->bhqd', p, v_cache)
        return (lambda x, *d: x.permute(*d))(o, 0, 2, 1, 3).reshape(B, Sq, H * Dh) @ wo

    def _B_ref(x, w1, w3, w2):
        gate = torch.einsum('bsd,df->bsf', x, w1)
        up = torch.einsum('bsd,df->bsf', x, w3)
        h = _silu(gate) * up
        out = torch.einsum('bsf,fd->bsd', h, w2)
        return out
    x = A_x
    mod = (_silu(c) @ w_mod).reshape(c.shape[0], 6, 1, -1)
    sa, ca, ga, sb, cb, gb = (mod[:, 0].clone(), mod[:, 1].clone(), mod[:, 2].clone(), mod[:, 3].clone(), mod[:, 4].clone(), mod[:, 5].clone())
    h = _layernorm(x, axis=-1) * (1 + ca) + sa
    x = x + ga * _A_ref(h, A_k_cache, A_v_cache, A_wq, A_wo)
    h = _layernorm(x, axis=-1) * (1 + cb) + sb
    x = x + gb * _B_ref(h, B_w1, B_w3, B_w2)
    return x
```

```python
NAME = "adaLN_cond__mha_block_cached__glu_gated_swiglu__decode"
class Asm:
    def __init__(self): self.L = []
    def __call__(self, s):
        for l in s.split("\n"):
            l = l.strip()
            if l: self.L.append(("" if l.endswith(":") else "    ") + l)
    def text(self): return "\n".join(self.L) + "\n"
def wrap(body, grid, block, lds, nvgpr, accum, nsgpr=102, name=NAME + "_kernel"):
    return f"""; @launch grid=({grid},1,1) block=({block},1,1) lds={lds}
.amdgcn_target "amdgcn-amd-amdhsa--gfx950"
.text
.globl {name}
.p2align 8
.type {name},@function
{name}:
{body}
.section .rodata,"a"
.p2align 6
.amdhsa_kernel {name}
  .amdhsa_next_free_vgpr {nvgpr}
  .amdhsa_next_free_sgpr {nsgpr}
  .amdhsa_accum_offset {accum}
  .amdhsa_group_segment_fixed_size 0
  .amdhsa_kernarg_size 112
  .amdhsa_user_sgpr_count 2
  .amdhsa_user_sgpr_kernarg_segment_ptr 1
  .amdhsa_system_sgpr_workgroup_id_x 1
  .amdhsa_float_denorm_mode_32 3
.end_amdhsa_kernel
"""
```

```python
import re
def regs(tok):
    tok = tok.strip()
    tok = re.sub(r'^-|^abs\(|\)$|^\|', '', tok).strip('|')
    m = re.fullmatch(r'([vsa])(\d+)', tok)
    if m: return {(m.group(1), int(m.group(2)))}
    m = re.fullmatch(r'([vsa])\[(\d+):(\d+)\]', tok)
    if m: return {(m.group(1), i) for i in range(int(m.group(2)), int(m.group(3)) + 1)}
    if tok == 'vcc': return {('s', 'vcc')}
    if tok == 'exec': return {('s', 'exec')}
    if tok == 'm0': return {('s', 'm0')}
    return set()
TRANS = ('v_exp_f32', 'v_log_f32', 'v_rcp_f32', 'v_rsq_f32', 'v_sqrt_f32', 'v_sin_f32', 'v_cos_f32')
class I:
    def __init__(self, line):
        self.line = line
        s = line.split(';')[0].strip()
        self.label = s.endswith(':') or s.startswith('.') or not s
        self.op = ''; self.w = set(); self.r = set(); self.kind = ''
        if self.label: return
        p = s.split(None, 1); self.op = p[0]
        rest = p[1] if len(p) > 1 else ''
        ops = [o.strip() for o in rest.split(',')]
        last = ops[-1].split()
        mods = ' '.join(last[1:]) if last else ''
        if last: ops[-1] = last[0]
        self.mods = mods
        R = [regs(o) for o in ops]
        op = self.op
        allr = lambda xs: set().union(*xs) if xs else set()
        self.dpp = '_dpp' in op
        if op.startswith('v_mfma'):
            self.kind = 'mfma'; self.w = R[0]; self.a = R[1] | R[2]; self.c = R[3]; self.r = self.a | self.c
        elif op.startswith('v_'):
            self.kind = 'valu'
            if op.startswith('v_permlane'):
                self.w = R[0] | R[1]; self.r = R[0] | R[1]
            elif op.startswith('v_cmp'):
                self.w = R[0]; self.r = allr(R[1:])
            elif op.startswith('v_add_co') or op.startswith('v_addc_co') or op.startswith('v_sub_co'):
                self.w = R[0] | R[1]; self.r = allr(R[2:])
            else:
                self.w = R[0]; self.r = allr(R[1:])
                if op.startswith('v_fmac') or op.startswith('v_dot2c') or self.dpp or op.startswith('v_writelane'): self.r |= R[0]
            if op.startswith('v_cndmask') and len(ops) == 3: self.r |= {('s', 'vcc')}
        elif op.startswith('ds_'):
            self.kind = 'ds'
            if op.startswith('ds_read') or 'permute' in op or 'swizzle' in op: self.w = R[0]; self.r = allr(R[1:])
            else: self.r = allr(R)
        elif op.startswith('buffer_') or op.startswith('global_'):
            self.kind = 'vmem'
            self.lds = ' lds' in (' ' + mods) or '_lds_' in op
            if 'store' in op or 'atomic' in op:
                self.r = allr(R); self.store = R[0] if op.startswith('buffer_') else R[1]
                self.wide = 'x4' in op or 'x3' in op
            elif self.lds: self.r = allr(R)
            else: self.w = R[0]; self.r = allr(R[1:])
        elif op.startswith('s_nop'):
            self.kind = 'nop'; self.n = int(ops[0]) + 1
        elif op.startswith('s_'):
            self.kind = 'salu'
            if op.startswith('s_cmp') or op.startswith('s_cbranch') or op.startswith('s_branch') or op.startswith('s_waitcnt') or op in ('s_barrier', 's_endpgm', 's_sleep', 's_setprio', 's_bitcmp1_b32', 's_bitcmp0_b32'):
                self.r = allr(R)
                if op in ('s_cbranch_vccnz', 's_cbranch_vccz'): self.r |= {('s', 'vcc')}
            else:
                self.w = R[0]; self.r = allr(R[1:])
                if 'saveexec' in op: self.w |= {('s', 'exec')}
        else:
            raise ValueError(line)
def need(p, c):
    n = 0
    V = lambda s: {x for x in s if x[0] in 'va'}
    S = lambda s: {x for x in s if x[0] == 's'}
    if p.kind == 'valu':
        if c.kind == 'valu' and c.dpp and V(p.w) & V(c.r): n = max(n, 2)
        if c.kind == 'valu' and c.op.startswith('v_permlane') and V(p.w) & V(c.r): n = max(n, 2)
        if c.kind == 'valu' and (c.op.startswith('v_readlane') or c.op.startswith('v_readfirstlane')) and V(p.w) & V(c.r): n = max(n, 1)
        if c.kind == 'mfma' and V(p.w) & c.r: n = max(n, 2)
        if c.kind == 'valu' and S(p.w) & S(c.r): n = max(n, 4 if c.op.startswith('v_readlane') or c.op.startswith('v_writelane') else 2)
        if c.kind == 'vmem' and S(p.w) & S(c.r): n = max(n, 5)
        if c.kind == 'salu' and S(p.w) & S(c.r): n = max(n, 1)
        if p.op.startswith(TRANS) and c.kind in ('valu',) and not c.op.startswith(TRANS) and V(p.w) & V(c.r): n = max(n, 1)
        if p.op.startswith(TRANS) and c.kind in ('valu',) and c.op.startswith(TRANS) and V(p.w) & V(c.r): n = max(n, 1)
    if p.kind == 'mfma':
        passes4 = '16x16x32' in p.op
        assert passes4
        if c.kind == 'mfma':
            if p.w & c.a: n = max(n, 8)
            if p.w & c.c and p.w != c.c: n = max(n, 6)
        elif c.kind in ('valu', 'ds', 'vmem'):
            if p.w & (c.r | c.w): n = max(n, 8)
        if c.kind == 'valu' and p.c & c.w: n = max(n, 3)
    if p.kind == 'vmem' and getattr(p, 'wide', False):
        if c.kind == 'valu' and p.store & c.w: n = max(n, 2)
        elif p.store & c.w: n = max(n, 1)
    if p.kind == 'salu' and ('s', 'm0') in p.w and c.kind == 'vmem' and getattr(c, 'lds', False): n = max(n, 1)
    return n
def fix(text):
    out = []; hist = []
    added = 0
    for line in text.split('\n'):
        ins = I(line)
        if ins.label:
            out.append(line); continue
        req = 0; dist = 0
        for p in reversed(hist):
            nd = need(p, ins)
            if nd > dist: req = max(req, nd - dist)
            dist += p.n if p.kind == 'nop' else 1
            if dist >= 12: break
        if req:
            out.append(f"    s_nop {req-1}"); nop = I(f"s_nop {req-1}"); hist.append(nop); added += req
        out.append(line); hist.append(ins)
        if len(hist) > 16: hist.pop(0)
    return '\n'.join(out), added
```

```python
import sys, struct
from asmlib import *
import hazard

W_EPOCH = 0
W_XT = 0x100
W_FM = 0x1000
W_RM = 0x9000
W_ML = 0xC000
W_RP = 0x10000
W_QB = 0x20000
W_OB = 0x40000
W_YB = 0x60000
W_ZB = 0x80000
W_DBG = 0x100000
WS_SIZE = 0x200000
L_FLAG = 0
L_Q = 64
L_ST = 320
L_P = 1024
L_R = L_P + 12288
L_Y = L_R
L_G = L_Y + 4096
L_X1 = L_G + 4096
LDS_SIZE = L_X1 + 2048
LOG2E = 0x3FB8AA3B
SCALE = 0x3DB504F3
EPS = 0x3727C5AC
LIMIT = 200000
NU = 37
KB = 104

class Cfg:
    diag = False
    kdepth = 8
    vdepth = 8
    sdepth = 0
    nsig = 28
    kpre = 0
    nt_w = "nt"
    nt_kv = "nt"
    prefetch = True
    force_slow = False
    perturb = 0.0
    sleep2 = 0
    nopoll = ''
    nosp = False
    prio = 0
    sleep1 = 0
    nojob = False

def gen(cfg):
    a = Asm()
    uid = [0]
    def lab(p):
        uid[0] += 1; return f"L_{p}{uid[0]}"
    def srd(n, lo, size):
        a(f"s_mov_b32 s{n}, s{lo}\ns_mov_b32 s{n+1}, s{lo+1}\ns_mov_b32 s{n+2}, {hex(size)}\ns_mov_b32 s{n+3}, 0x20000")
    def ts(i):
        if cfg.diag: a(f"s_memrealtime s[{70+2*i}:{71+2*i}]")
    def rb2(d0, d1, s0, s1, t):
        a(f"v_cvt_pk_bf16_f32 v{t}, v{s0}, v{s1}\nv_lshlrev_b32 v{d0}, 16, v{t}\nv_and_b32 v{d1}, s28, v{t}")
    def rb1(d, s):
        a(f"v_cvt_pk_bf16_f32 v{d}, v{s}, v{s}\nv_lshlrev_b32 v{d}, 16, v{d}")
    DPPM = "row_mask:0xf bank_mask:0xf"
    def reduce_steps(op, regs, tmps, steps):
        for st in steps:
            if st in ("p16", "p32"):
                for r, t in zip(regs, tmps): a(f"v_mov_b32 v{t}, v{r}")
                for r, t in zip(regs, tmps): a(f"v_permlane{st[1:]}_swap_b32 v{r}, v{t}")
                for r, t in zip(regs, tmps): a(f"{op} v{r}, v{r}, v{t}")
            else:
                m = {"q1": "quad_perm:[1,0,3,2]", "q2": "quad_perm:[2,3,0,1]", "hm": "row_half_mirror", "m": "row_mirror", "r4": "row_ror:4", "r8": "row_ror:8"}[st]
                for r in regs: a(f"{op}_dpp v{r}, v{r}, v{r} {m} {DPPM}")
    FULL = ["q1", "q2", "hm", "m", "p16", "p32"]
    def tagcheck(regs, stag, mask, acc):
        a(f"v_xor_b32 v{acc}, {stag}, v{regs[0]}")
        for r in regs[1:]: a(f"v_bitop3_b32 v{acc}, v{acc}, v{r}, {stag} bitop3:0xf6")
        a(f"v_and_b32 v{acc}, {hex(mask)}, v{acc}\nv_cmp_ne_u32 vcc, 0, v{acc}")
    def poll(loads, regs, stag, mask, acc, sleep=0, name=''):
        if name and name in cfg.nopoll:
            a(loads); a("s_waitcnt vmcnt(0)"); return
        l = lab("poll"); a(f"s_mov_b32 s33, 0\n{l}:")
        a(loads)
        a(f"s_add_u32 s33, s33, 1\ns_cmp_gt_u32 s33, {LIMIT}\ns_cbranch_scc1 L_exit\ns_waitcnt vmcnt(0)")
        tagcheck(regs, stag, mask, acc)
        if sleep:
            d = lab("got"); a(f"s_cbranch_vccz {d}\ns_sleep {sleep}\ns_branch {l}\n{d}:")
        else:
            a(f"s_cbranch_vccnz {l}")
    def ldspoll(vaddr, off, vtmp, target):
        l = lab("lpoll"); d = lab("lgot")
        a(f"""s_mov_b32 s33, 0
        {l}:
        ds_read_b32 v{vtmp}, v{vaddr} offset:{off}
        s_add_u32 s33, s33, 1
        s_cmp_gt_u32 s33, {LIMIT * 4}
        s_cbranch_scc1 L_exit
        s_waitcnt lgkmcnt(0)
        v_readfirstlane_b32 s7, v{vtmp}
        s_cmp_ge_u32 s7, {target}
        s_cbranch_scc1 {d}
        s_sleep 1
        s_branch {l}
        {d}:""")
    def tags():
        a("s_add_u32 s24, s24, 1\ns_and_b32 s25, s24, 0xffff\ns_and_b32 s26, s24, 15\ns_sub_u32 s27, 8, s26\ns_mov_b32 s28, 0xffff0000")
    def masks(M, t0, t1, t2):
        a(f"""v_and_b32 v{t0}, 15, v0
        v_and_b32 v{t1}, 1, v0
        v_mov_b32 v{t2}, 0xffff
        v_lshlrev_b32 v{t1}, 4, v{t1}
        v_lshlrev_b32 v{t2}, v{t1}, v{t2}
        v_lshrrev_b32 v{t0}, 1, v{t0}""")
        for j in range(4): a(f"v_cmp_eq_u32 vcc, {j}, v{t0}\nv_cndmask_b32 v{M+j}, 0, v{t2}, vcc")
    def vtrick(n, data, mult, M, A, D, wait=None, first=True, lo=0):
        def aprep(i):
            r, ln = mult(i)
            for j in range(4): a(f"v_and_b32_dpp v{A+4*(i&1)+j}, v{r}, v{M+j} row_newbcast:{ln} {DPPM}")
        aprep(lo)
        for i in range(lo, n):
            if i + 1 < n: aprep(i + 1)
            if wait: wait(i)
            c = "0" if (i == lo and first) else f"v[{D}:{D+3}]"
            a(f"v_mfma_f32_16x16x32_bf16 v[{D}:{D+3}], v[{A+4*(i&1)}:{A+4*(i&1)+3}], v[{data+4*i}:{data+4*i+3}], {c}")
    def sum4swap(b):
        for k in range(4): a(f"v_add_f32 v{b+k}, v{b+k}, v{b+4+k}")
        for k in range(4): a(f"v_add_f32 v{b+8+k}, v{b+8+k}, v{b+12+k}")
        for k in range(4): a(f"v_add_f32 v{b+k}, v{b+k}, v{b+8+k}")
        a(f"""v_permlane32_swap_b32 v{b}, v{b+2}
        v_permlane32_swap_b32 v{b+1}, v{b+3}
        v_add_f32 v{b}, v{b}, v{b+2}
        v_add_f32 v{b+1}, v{b+1}, v{b+3}""")
    def reduce4(b):
        for k in range(4): a(f"v_add_f32 v{b+k}, v{b+k}, v{b+4+k}")
        a(f"""v_permlane32_swap_b32 v{b}, v{b+2}
        v_permlane32_swap_b32 v{b+1}, v{b+3}
        v_add_f32 v{b}, v{b}, v{b+2}
        v_add_f32 v{b+1}, v{b+1}, v{b+3}
        v_permlane16_swap_b32 v{b}, v{b+1}
        v_add_f32 v{b}, v{b}, v{b+1}""")
    def tag8(regs, exact=False):
        if exact:
            for r in regs: a(f"v_add_u32 v{r}, s27, v{r}")
        for r in regs: a(f"v_bfi_b32 v{r}, 15, s26, v{r}")
    def silu(d, s, t):
        a(f"v_mul_f32 v{t}, s7, v{s}\nv_exp_f32 v{t}, v{t}\nv_add_f32 v{t}, 1.0, v{t}\nv_rcp_f32 v{t}, v{t}\nv_mul_f32 v{d}, v{s}, v{t}")
    NLOG2E = hex(LOG2E ^ 0x80000000)

    a("""
    s_cmp_ge_u32 s2, 256
    s_cbranch_scc1 L_end
    s_load_dwordx16 s[36:51], s[0:1], 0
    s_load_dwordx8 s[52:59], s[0:1], 64
    s_load_dwordx2 s[60:61], s[0:1], 104
    """)
    if cfg.diag:
        for i in range(1, 12): a(f"s_mov_b32 s{70+2*i}, 0")
    ts(0)
    a("""
    v_lshrrev_b32 v1, 6, v0
    v_and_b32 v0, 63, v0
    s_and_b32 s4, s2, 7
    s_lshr_b32 s5, s2, 3
    v_readfirstlane_b32 s3, v1
    s_lshl_b32 s6, s4, 5
    s_add_u32 s6, s6, s5
    s_and_b32 s94, s5, 7
    s_lshr_b32 s95, s6, 3
    v_lshrrev_b32 v3, 4, v0
    v_and_b32 v4, 15, v0
    s_cmp_eq_u32 s94, 7
    s_cbranch_scc1 L_SP
    s_mul_i32 s96, s94, 37
    s_sub_u32 s7, s94, 4
    s_max_i32 s7, s7, 0
    s_sub_u32 s96, s96, s7
    s_lshl_b32 s96, s96, 12
    s_lshl_b32 s7, s95, 20
    s_add_u32 s96, s96, s7
    s_cmp_ge_u32 s3, 4
    s_cbranch_scc1 L_VW
    """)
    a("""
    v_bfe_u32 v2, v0, 2, 2
    v_lshlrev_b32 v2, 8, v2
    v_lshl_add_u32 v2, v3, 6, v2
    v_and_b32 v5, 3, v0
    v_lshl_add_u32 v2, v5, 4, v2
    s_lshl_b32 s29, s3, 10
    s_add_u32 s7, s96, s29
    v_add_u32 v2, s7, v2
    s_waitcnt lgkmcnt(0)
    """)
    srd(8, 38, 0x2000000)
    a("s_load_dword s24, s[60:61], 0\ns_mov_b32 s29, 0")
    if cfg.kpre == 0: a("s_barrier")
    a(f"v_mov_b32 v8, {L_FLAG}\nv_mov_b32 v6, 1")
    for i in range(NU):
        if i == 36: a("s_cmp_ge_u32 s94, 4\ns_cbranch_scc1 L_k36")
        if cfg.kdepth and i >= cfg.kdepth: a(f"s_waitcnt vmcnt({cfg.kdepth-1})")
        if i: a("s_add_u32 s29, s29, 4096")
        a(f"buffer_load_dwordx4 v[{KB+4*i}:{KB+4*i+3}], v2, s[8:11], s29 offen {cfg.nt_kv}")
        if i == cfg.kpre - 1: a("s_barrier")
        if i == cfg.nsig - 1:
            a("s_mov_b64 exec, 1\nds_add_u32 v8, v6\ns_mov_b64 exec, -1")
    a("L_k36:")
    if cfg.prio: a(f"s_setprio {cfg.prio}")
    ts(1)
    srd(20, 60, WS_SIZE)
    a(f"""
    v_lshl_add_u32 v7, v3, 2, v5
    v_lshlrev_b32 v7, 4, v7
    s_mov_b32 s62, 0x000f000f
    s_mov_b32 s63, 0x000f000f
    s_lshl_b64 s[64:65], s[62:63], 4
    s_lshl_b64 s[66:67], s[62:63], 8
    s_lshl_b64 s[68:69], s[62:63], 12
    s_waitcnt lgkmcnt(0)
    """)
    tags()
    a(f"""
    s_cmp_lg_u32 s3, 0
    s_cbranch_scc1 L_kq_wait
    v_and_b32 v9, 31, v0
    v_lshrrev_b32 v11, 5, v0
    v_lshlrev_b32 v12, 9, v11
    v_lshl_add_u32 v12, v9, 4, v12
    s_lshl_b32 s7, s95, 12
    s_add_u32 s7, s7, {W_QB}
    v_add_u32 v12, s7, v12
    s_lshl_b32 s7, s4, 7
    s_add_u32 s7, s7, {W_XT}
    v_lshl_add_u32 v13, v9, 2, s7
    v_lshlrev_b32 v10, 2, v11
    v_lshl_add_u32 v10, v9, 3, v10
    s_getreg_b32 s30, hwreg(HW_REG_XCC_ID, 0, 4)
    s_lshl_b32 s34, s24, 8
    s_or_b32 s30, s30, s34
    """)
    poll("\n".join(f"buffer_load_dwordx4 v[{72+4*ii}:{75+4*ii}], v12, s[20:23], 0 offen offset:{ii*1024} sc1" for ii in range(4)) + "\nbuffer_load_dword v89, v13, s[20:23], 0 offen sc1",
         list(range(72, 88)), "s26", 15, 88, cfg.sleep1, 'q')
    ts(2)
    a("v_cmp_ne_u32 vcc, s30, v89")
    sum4swap(72)
    a("s_cmp_eq_u64 vcc, 0\ns_cselect_b32 s34, 1, 0")
    if cfg.force_slow: a("s_mov_b32 s34, 0")
    a(f"""
    v_cvt_pk_bf16_f32 v72, v72, v73
    v_mov_b32 v73, s34
    ds_write_b32 v10, v72 offset:{L_Q}
    ds_write_b32 v8, v73 offset:4
    s_waitcnt lgkmcnt(0)
    ds_write_b32 v8, v6 offset:8
    L_kq_wait:
    """)
    ldspoll(8, 8, 9, 1)
    a(f"""
    ds_read_b128 v[12:15], v7 offset:{L_Q}
    ds_read_b32 v9, v8 offset:4
    s_waitcnt lgkmcnt(0)
    v_readfirstlane_b32 s34, v9
    """)
    for t in range(4):
        for k in range(4): a(f"v_cndmask_b32 v{16+4*t+k}, 0, v{12+k}, s[{62+2*t}:{63+2*t}]")
    a("s_waitcnt vmcnt(0)")
    for i in range(NU):
        u, t = i >> 2, i & 3
        c = "0" if t == 0 else f"v[{32+4*u}:{35+4*u}]"
        if i == 36: a("s_cmp_ge_u32 s94, 4\ns_cselect_b64 s[62:63], 0, s[62:63]")
        a(f"v_mfma_f32_16x16x32_bf16 v[{32+4*u}:{35+4*u}], v[{KB+4*i}:{KB+4*i+3}], v[{16+4*t}:{19+4*t}], {c}")
    S = 72
    for u in range(10): a(f"v_mov_b32_dpp v{S+u}, v{32+4*u} quad_perm:[0,0,0,0] {DPPM}")
    for j in range(1, 4):
        for u in range(10): a(f"v_add_f32_dpp v{S+u}, v{32+4*u+j}, v{S+u} quad_perm:[{j},{j},{j},{j}] {DPPM}")
    a(f"s_mov_b32 s7, {hex(SCALE)}")
    for p in range(5): rb2(S+2*p, S+1+2*p, S+2*p, S+1+2*p, 84+p)
    for u in range(10): a(f"v_mul_f32 v{S+u}, s7, v{S+u}")
    for p in range(5): rb2(S+2*p, S+1+2*p, S+2*p, S+1+2*p, 84+p)
    a(f"""v_mov_b32 v84, 0xff800000
    v_cndmask_b32 v{S+9}, v84, v{S+9}, s[62:63]
    v_max3_f32 v84, v{S}, v{S+1}, v{S+2}
    v_max3_f32 v85, v{S+3}, v{S+4}, v{S+5}
    v_max3_f32 v86, v{S+6}, v{S+7}, v{S+8}
    v_max3_f32 v84, v84, v85, v86
    v_max_f32 v84, v84, v{S+9}""")
    reduce_steps("v_max_f32", [84], [85], ["r4", "r8", "p16", "p32"])
    a(f"s_mov_b32 s7, {hex(LOG2E)}")
    for u in range(10): a(f"v_sub_f32 v{S+u}, v{S+u}, v84")
    for u in range(10): a(f"v_mul_f32 v{S+u}, s7, v{S+u}")
    for u in range(10): a(f"v_exp_f32 v{S+u}, v{S+u}")
    a(f"""v_add_f32 v86, v{S}, v{S+1}
    v_add_f32 v87, v{S+2}, v{S+3}
    v_add_f32 v88, v{S+4}, v{S+5}
    v_add_f32 v89, v{S+6}, v{S+7}
    v_add_f32 v90, v{S+8}, v{S+9}
    v_add_f32 v86, v86, v87
    v_add_f32 v88, v88, v89
    v_add_f32 v86, v86, v90
    v_add_f32 v86, v86, v88""")
    reduce_steps("v_add_f32", [86], [87], ["r4", "r8", "p16", "p32"])
    a(f"""
    v_or_b32 v88, s25, v84
    v_mov_b32 v89, v86
    v_mov_b32 v90, s24
    v_mov_b32 v91, s24
    s_lshl_b32 s29, s6, 6
    s_lshl_b32 s35, s3, 4
    s_add_u32 s29, s29, s35
    s_add_u32 s29, s29, {W_ML}
    v_mov_b32 v92, s29
    v_and_b32 v93, 31, v0
    v_cmp_gt_u32 s[64:65], 28, v93
    v_min_u32 v93, 27, v93
    v_lshlrev_b32 v93, 4, v93
    s_lshl_b32 s29, s95, 9
    s_add_u32 s29, s29, {W_ML}
    v_add_u32 v93, s29, v93
    s_mov_b64 exec, 1
    s_cmp_eq_u32 s34, 1
    s_cbranch_scc1 L_ml_fast
    buffer_store_dwordx4 v[88:91], v92, s[20:23], 0 offen sc1
    s_branch L_ml_done
    L_ml_fast:
    buffer_store_dwordx4 v[88:91], v92, s[20:23], 0 offen
    L_ml_done:
    s_mov_b64 exec, -1
    """)
    ts(3)
    l = lab("poll")
    a(f"""s_mov_b32 s33, 0
    {l}:
    buffer_load_dwordx4 v[96:99], v93, s[20:23], 0 offen sc1
    s_add_u32 s33, s33, 1
    s_cmp_gt_u32 s33, {LIMIT}
    s_cbranch_scc1 L_exit
    s_waitcnt vmcnt(0)
    v_and_b32 v94, 0xffff, v96
    v_xor_b32 v94, s25, v94
    v_bitop3_b32 v94, v94, v98, s24 bitop3:0xf6
    v_cmp_ne_u32 vcc, 0, v94""")
    if 'm' not in cfg.nopoll: a(f"s_cbranch_vccnz {l}")
    ts(4)
    a("v_and_b32 v96, s28, v96\nv_cndmask_b32 v97, 0, v97, s[64:65]\nv_mov_b32 v100, v96")
    reduce_steps("v_max_f32", [100], [101], ["q1", "q2", "hm", "m", "p16"])
    a("""v_sub_f32 v96, v96, v100
    v_sub_f32 v84, v84, v100
    v_mul_f32 v96, s7, v96
    v_mul_f32 v84, s7, v84
    v_exp_f32 v96, v96
    v_exp_f32 v84, v84
    v_mul_f32 v97, v97, v96""")
    reduce_steps("v_add_f32", [97], [101], ["q1", "q2", "hm", "m", "p16"])
    a("v_rcp_f32 v97, v97\nv_mul_f32 v84, v84, v97")
    for u in range(10): a(f"v_mul_f32 v{S+u}, v{S+u}, v84")
    for u in range(10): a(f"v_cvt_pk_bf16_f32 v{S+u}, v{S+u}, v{S+u}")
    a(f"""
    s_mul_i32 s29, s3, 3072
    s_add_u32 s29, s29, {L_P}
    v_lshl_add_u32 v94, v0, 4, s29
    ds_write_b128 v94, v[{S}:{S+3}]
    ds_write_b128 v94, v[{S+4}:{S+7}] offset:1024
    ds_write_b128 v94, v[{S+8}:{S+11}] offset:2048
    s_waitcnt lgkmcnt(0)
    """)
    ts(5)
    a("s_barrier\ns_branch L_exit")

    a("""
    L_VW:
    s_cmp_eq_u32 s3, 6
    s_cbranch_scc1 L_PW
    s_cmp_eq_u32 s3, 7
    s_cbranch_scc1 L_ZW
    """)
    if cfg.nojob: a("s_waitcnt lgkmcnt(0)\ns_load_dword s24, s[60:61], 0\ns_barrier\ns_waitcnt lgkmcnt(0)"); tags(); a("s_branch L_V")
    if cfg.prio: a(f"s_setprio {cfg.prio}")
    a(f"""
    s_lshl_b32 s7, s95, 1
    s_add_u32 s7, s7, s94
    s_sub_u32 s7, s7, 1
    s_and_b32 s98, s7, 7
    s_lshr_b32 s99, s7, 3
    s_lshl_b32 s7, s95, 2
    s_add_u32 s7, s7, s94
    s_sub_u32 s7, s7, 3
    s_and_b32 s29, s7, 15
    s_lshr_b32 s7, s7, 4
    s_cmp_ge_u32 s94, 3
    s_cselect_b32 s98, s29, s98
    s_cselect_b32 s99, s7, s99
    s_cselect_b32 s97, 2, 1
    s_cmp_eq_u32 s94, 0
    s_cselect_b32 s98, 7, s98
    s_cselect_b32 s97, 0, s97
    s_cmp_eq_u32 s3, 4
    s_cselect_b32 s98, s94, s98
    s_cselect_b32 s97, 0, s97
    s_cmp_lg_u32 s97, 0
    s_cbranch_scc1 L_job_mod
    s_lshl_b32 s7, s98, 19
    s_lshl_b32 s29, s95, 8
    s_add_u32 s7, s7, s29
    v_lshlrev_b32 v2, 13, v3
    v_lshl_add_u32 v2, v4, 4, v2
    v_add_u32 v2, s7, v2
    s_mov_b32 s35, 32768
    s_lshl_b32 s7, s98, 6
    v_lshl_add_u32 v5, v4, 2, v3
    v_add_u32 v5, s7, v5
    v_lshlrev_b32 v5, 1, v5
    v_lshlrev_b32 v6, 4, v0
    s_waitcnt lgkmcnt(0)
    """)
    srd(8, 42, 0x400000)
    srd(16, 36, 1024)
    a("""
    buffer_load_dwordx4 v[8:11], v6, s[16:19], 0 offen
    buffer_load_ushort v12, v5, s[16:19], 0 offen
    s_branch L_job_ld
    L_job_mod:
    s_mul_i32 s7, s99, 393216
    v_mul_u32_u24 v2, 6144, v3
    v_and_b32 v5, 7, v4
    v_lshrrev_b32 v6, 3, v4
    v_lshlrev_b32 v6, 10, v6
    v_lshl_add_u32 v6, v5, 4, v6
    v_lshlrev_b32 v5, 4, v4
    s_lshl_b32 s29, s98, 7
    s_lshl_b32 s35, s98, 8
    s_add_u32 s35, s35, 2048
    s_cmp_eq_u32 s97, 1
    s_cselect_b32 s29, s29, s35
    s_cselect_b64 vcc, -1, 0
    s_add_u32 s7, s7, s29
    v_cndmask_b32 v5, v5, v6, vcc
    v_add3_u32 v2, v2, v5, s7
    s_mov_b32 s35, 24576
    s_lshl_b32 s7, s99, 6
    v_lshl_add_u32 v5, v4, 2, v3
    v_add_u32 v5, s7, v5
    v_lshlrev_b32 v5, 1, v5
    s_waitcnt lgkmcnt(0)
    """)
    srd(8, 56, 512 * 6144)
    srd(16, 54, 1024)
    a("""
    buffer_load_ushort v12, v5, s[16:19], 0 offen
    buffer_load_ushort v12, v5, s[16:19], 0 offen
    L_job_ld:
    s_mov_b32 s29, 0
    """)
    JB = 128
    for i in range(16):
        if i: a("s_add_u32 s29, s29, s35")
        a(f"buffer_load_dwordx4 v[{JB+4*i}:{JB+4*i+3}], v2, s[8:11], s29 offen {cfg.nt_w}")
    a("s_load_dword s24, s[60:61], 0\ns_barrier")
    srd(20, 60, WS_SIZE)
    masks(24, 13, 14, 15)
    a(f"""
    s_waitcnt lgkmcnt(0)
    """)
    tags()
    a(f"""
    s_lshl_b32 s7, s95, 3
    s_add_u32 s7, s7, s98
    s_lshl_b32 s7, s7, 9
    s_add_u32 s7, s7, {W_QB}
    s_lshl_b32 s29, s98, 3
    s_add_u32 s29, s29, s99
    s_lshl_b32 s29, s29, 9
    s_add_u32 s35, s29, {W_FM}
    s_add_u32 s29, s29, {W_RP}
    s_cmp_eq_u32 s97, 1
    s_cselect_b32 s7, s35, s7
    s_cmp_eq_u32 s97, 2
    s_cselect_b32 s7, s29, s7
    v_lshlrev_b32 v31, 5, v4
    v_lshl_add_u32 v31, v3, 4, v31
    v_add_u32 v31, s7, v31
    s_waitcnt vmcnt(16)
    v_lshlrev_b32 v12, 16, v12
    s_cmp_eq_u32 s97, 0
    s_cbranch_scc1 L_job_q
    s_mov_b32 s7, {NLOG2E}
    """)
    silu(16, 12, 17)
    a("v_cvt_pk_bf16_f32 v16, v16, v16\ns_branch L_job_mm\nL_job_q:")
    for k in range(4): a(f"v_lshlrev_b32 v{16+2*k}, 16, v{8+k}\nv_and_b32 v{17+2*k}, s28, v{8+k}")
    a("""v_add_f32 v32, v16, v17
    v_add_f32 v33, v18, v19
    v_add_f32 v34, v20, v21
    v_add_f32 v35, v22, v23
    v_add_f32 v32, v32, v33
    v_add_f32 v34, v34, v35
    v_add_f32 v32, v32, v34""")
    reduce_steps("v_add_f32", [32], [33], FULL)
    a("s_mov_b32 s29, 0x3b000000\nv_mul_f32 v32, s29, v32")
    for k in range(8): a(f"v_sub_f32 v{16+k}, v{16+k}, v32")
    a("v_mul_f32 v33, v16, v16")
    for k in range(1, 8): a(f"v_fmac_f32 v33, v{16+k}, v{16+k}")
    reduce_steps("v_add_f32", [33], [34], FULL)
    a("v_mul_f32 v33, s29, v33")
    rb2(32, 33, 32, 33, 34)
    a(f"s_mov_b32 s7, {hex(EPS)}\nv_add_f32 v33, s7, v33")
    rb1(33, 33)
    a("v_sqrt_f32 v33, v33\nv_sub_f32 v12, v12, v32")
    rb1(33, 33); rb1(12, 12)
    a("v_rcp_f32 v33, v33\nv_mul_f32 v12, v12, v33")
    rb1(12, 12)
    a(f"""
    v_and_b32 v9, 31, v0
    v_lshrrev_b32 v11, 5, v0
    v_lshlrev_b32 v10, 9, v11
    v_lshl_add_u32 v10, v9, 4, v10
    s_lshl_b32 s7, s98, 12
    s_add_u32 s7, s7, {W_FM}
    v_add_u32 v10, s7, v10
    s_waitcnt vmcnt(0)
    """)
    ts(1)
    poll("\n".join(f"buffer_load_dwordx4 v[{40+4*ii}:{43+4*ii}], v10, s[20:23], 0 offen offset:{ii*1024} sc1" for ii in range(4)),
         list(range(40, 56)), "s26", 15, 56, cfg.sleep1, 'h')
    ts(2)
    sum4swap(40)
    a("v_permlane16_swap_b32 v40, v41")
    rb2(40, 41, 40, 41, 42)
    a("v_add_f32 v41, 1.0, v41")
    rb1(41, 41)
    a("v_mul_f32 v41, v12, v41")
    rb1(41, 41)
    a("v_add_f32 v41, v41, v40\nv_cvt_pk_bf16_f32 v16, v41, v41\nL_job_mm:")
    vtrick(16, JB, lambda i: (16, i), 24, 32, 40, wait=lambda i: a(f"s_waitcnt vmcnt({15-i})"))
    tag8([40, 41, 42, 43], True)
    a("""
    s_mov_b64 exec, 0xffffffff
    buffer_store_dwordx4 v[40:43], v31, s[20:23], 0 offen sc1
    s_mov_b64 exec, -1
    """)
    ts(3)
    a("s_branch L_V")
    a(f"""
    L_ZW:
    v_mov_b32 v8, 0
    v_mov_b32 v9, 0
    v_mov_b32 v10, 0
    v_mov_b32 v11, 0
    ds_write_b128 v8, v[8:11] offset:{L_FLAG}
    s_waitcnt lgkmcnt(0)
    s_barrier
    s_branch L_V
    """)
    def prefetch_xt():
        if cfg.prefetch:
            p = lab("pc")
            a(f"""
            s_getpc_b64 s[30:31]
            {p}:
            s_sub_u32 s30, s30, {p}-L_start
            s_subb_u32 s31, s31, 0
            v_lshlrev_b32 v2, 7, v0
            v_min_u32 v5, L_end-L_start, v2
            global_load_dword v60, v5, s[30:31]
            v_add_u32 v2, 8192, v2
            v_min_u32 v5, L_end-L_start, v2
            global_load_dword v61, v5, s[30:31]
            v_add_u32 v2, 8192, v2
            v_min_u32 v5, L_end-L_start, v2
            global_load_dword v62, v5, s[30:31]
            """)
        a("s_waitcnt lgkmcnt(0)\ns_load_dword s24, s[60:61], 0")
        srd(20, 60, WS_SIZE)
        a(f"""
        s_getreg_b32 s30, hwreg(HW_REG_XCC_ID, 0, 4)
        s_lshl_b32 s29, s6, 2
        s_add_u32 s29, s29, {W_XT}
        v_mov_b32 v2, s29
        s_waitcnt lgkmcnt(0)
        s_add_u32 s7, s24, 1
        s_lshl_b32 s7, s7, 8
        s_or_b32 s30, s30, s7
        v_mov_b32 v5, s30
        s_mov_b64 exec, 1
        buffer_store_dword v5, v2, s[20:23], 0 offen sc1
        s_mov_b64 exec, -1
        """)
    a("L_PW:")
    prefetch_xt()
    a("s_barrier")
    a(f"""
    L_V:
    s_setprio 0
    s_waitcnt lgkmcnt(0)
    s_sub_u32 s98, s3, 4
    s_lshl_b32 s29, s98, 10
    s_add_u32 s7, s96, s29
    v_lshl_add_u32 v2, v0, 4, s7
    v_mov_b32 v8, {L_FLAG}
    """)
    srd(12, 40, 0x2000000)
    srd(20, 60, WS_SIZE)
    masks(24, 13, 14, 15)
    ldspoll(8, 0, 7, 4)
    a("s_mov_b32 s29, 0")
    ts(4)
    for i in range(NU):
        if i == 36: a("s_cmp_ge_u32 s94, 4\ns_cbranch_scc1 L_v36")
        if cfg.vdepth and i >= cfg.vdepth: a(f"s_waitcnt vmcnt({cfg.vdepth-1})")
        if i: a("s_add_u32 s29, s29, 4096")
        a(f"buffer_load_dwordx4 v[{KB+4*i}:{KB+4*i+3}], v2, s[12:15], s29 offen {cfg.nt_kv}")
    a(f"""
    L_v36:
    s_mul_i32 s29, s98, 3072
    s_add_u32 s29, s29, {L_P}
    v_lshl_add_u32 v9, v0, 4, s29
    s_lshl_b32 s29, s98, 9
    s_add_u32 s29, s29, {L_R}
    v_lshlrev_b32 v10, 5, v4
    v_lshl_add_u32 v10, v3, 4, v10
    v_add_u32 v10, s29, v10
    """)
    ts(5)
    a("s_barrier")
    ts(6)
    a("""ds_read_b128 v[12:15], v9
    ds_read_b128 v[16:19], v9 offset:1024
    ds_read_b128 v[20:23], v9 offset:2048
    ds_read_b32 v7, v8 offset:4
    s_waitcnt lgkmcnt(0)""")
    pm = lambda i: (12 + (i >> 2), 4 * (i & 3))
    vtrick(36, KB, pm, 24, 32, 40, wait=lambda i: a(f"s_waitcnt vmcnt({35-i})"))
    a("s_cmp_ge_u32 s94, 4\ns_cbranch_scc1 L_pvdone")
    vtrick(37, KB, pm, 24, 32, 40, first=False, lo=36)
    a("L_pvdone:")
    ts(7)
    a("""
    s_mov_b64 exec, 0xffffffff
    s_nop 7
    ds_write_b128 v10, v[40:43]
    s_mov_b64 exec, -1
    s_waitcnt lgkmcnt(0)
    s_barrier
    s_cmp_lg_u32 s3, 4
    s_cbranch_scc1 L_exit
    """)
    a(f"""
    v_and_b32 v9, 31, v0
    v_lshlrev_b32 v9, 4, v9
    ds_read_b128 v[16:19], v9 offset:{L_R}
    ds_read_b128 v[20:23], v9 offset:{L_R+512}
    ds_read_b128 v[24:27], v9 offset:{L_R+1024}
    ds_read_b128 v[28:31], v9 offset:{L_R+1536}
    v_readfirstlane_b32 s34, v7
    s_lshl_b32 s29, s6, 9
    s_add_u32 s29, s29, {W_OB}
    v_add_u32 v9, s29, v9
    s_waitcnt lgkmcnt(0)
    """)
    for k in range(4): a(f"v_add_f32 v{16+k}, v{16+k}, v{20+k}")
    for k in range(4): a(f"v_add_f32 v{24+k}, v{24+k}, v{28+k}")
    for k in range(4): a(f"v_add_f32 v{16+k}, v{16+k}, v{24+k}")
    tag8([16, 17, 18, 19])
    a("""
    s_mov_b64 exec, 0xffffffff
    s_cmp_eq_u32 s34, 1
    s_cbranch_scc1 L_o_fast
    buffer_store_dwordx4 v[16:19], v9, s[20:23], 0 offen sc1
    s_branch L_o_done
    L_o_fast:
    buffer_store_dwordx4 v[16:19], v9, s[20:23], 0 offen
    L_o_done:
    """)
    ts(8)
    a("s_branch L_exit")

    WO, F1, F2 = 64, 128, 192
    a("""
    L_SP:
    """)
    if cfg.nosp: a("s_branch L_exit")
    a("""
    s_lshr_b32 s97, s5, 3
    s_lshl_b32 s98, s4, 2
    s_add_u32 s98, s98, s97
    s_cmp_lg_u32 s3, 6
    s_cbranch_scc1 L_sp_nopf
    """)
    prefetch_xt()
    a(f"""
    L_sp_nopf:
    s_lshl_b32 s7, s4, 19
    s_lshl_b32 s29, s3, 16
    s_add_u32 s7, s7, s29
    s_lshl_b32 s29, s97, 8
    s_add_u32 s7, s7, s29
    v_lshlrev_b32 v5, 10, v3
    v_lshl_add_u32 v5, v4, 4, v5
    v_add_u32 v2, s7, v5
    s_waitcnt lgkmcnt(0)
    """)
    srd(8, 44, 0x400000)
    srd(20, 60, WS_SIZE)
    a("s_load_dword s24, s[60:61], 0\ns_mov_b32 s29, 0")
    cnt = [0]
    def thr():
        if cfg.sdepth and cnt[0] >= cfg.sdepth: a(f"s_waitcnt vmcnt({cfg.sdepth-1})")
        cnt[0] += 1
    for i in range(16):
        thr()
        if i: a("s_add_u32 s29, s29, 4096")
        a(f"buffer_load_dwordx4 v[{WO+4*i}:{WO+4*i+3}], v2, s[8:11], s29 offen {cfg.nt_w}")
    ts(1)
    masks(24, 13, 14, 15)
    a("s_waitcnt lgkmcnt(0)")
    tags()
    a(f"""
    v_lshl_add_u32 v6, v4, 2, v3
    s_cmp_lg_u32 s3, 7
    s_cbranch_scc1 L_sp_norm2
    s_lshl_b32 s7, s98, 8
    s_lshr_b32 s29, s98, 1
    s_lshl_b32 s29, s29, 12
    s_and_b32 s35, s98, 1
    s_lshl_b32 s35, s35, 8
    s_add_u32 s29, s29, s35
    s_add_u32 s29, s29, {W_RP}
    v_lshlrev_b32 v7, 9, v3
    v_lshl_add_u32 v7, v4, 4, v7
    v_add_u32 v7, s29, v7
    s_add_u32 s7, s7, {W_RM}
    v_lshl_add_u32 v8, v6, 2, s7
    """)
    poll("buffer_load_dwordx4 v[40:43], v7, s[20:23], 0 offen sc1\nbuffer_load_dwordx4 v[44:47], v7, s[20:23], 0 offen offset:2048 sc1", list(range(40, 48)), "s26", 15, 48)
    reduce4(40)
    rb1(40, 40)
    a("""
    v_or_b32 v40, s25, v40
    buffer_store_dword v40, v8, s[20:23], 0 offen sc1
    L_sp_norm2:
    s_cmp_ge_u32 s98, 29
    s_cbranch_scc1 L_sp_noffn
    s_mul_i32 s7, s98, 6
    v_and_b32 v7, 7, v4
    v_add_u32 v7, s7, v7
    v_min_u32 v7, 171, v7
    v_lshlrev_b32 v7, 4, v7
    s_lshl_b32 s7, s3, 6
    v_add_u32 v8, s7, v3
    v_mul_u32_u24 v8, 2752, v8
    v_add_u32 v7, v7, v8
    v_mov_b32 v8, s48
    v_mov_b32 v9, s49
    v_mov_b32 v10, s50
    v_mov_b32 v11, s51
    v_cmp_gt_u32 vcc, 8, v4
    v_cndmask_b32 v8, v10, v8, vcc
    v_cndmask_b32 v9, v11, v9, vcc
    v_add_co_u32 v8, vcc, v8, v7
    v_addc_co_u32 v9, vcc, 0, v9, vcc
    s_mov_b32 s62, 0x3f3f3f3f
    s_mov_b32 s63, 0x3f3f3f3f
    s_mov_b64 exec, s[62:63]
    """)
    for i in range(16):
        thr()
        a(f"global_load_dwordx4 v[{F1+4*i}:{F1+4*i+3}], v[8:9], off {cfg.nt_w}")
        if i < 15: a("v_add_co_u32 v8, vcc, 11008, v8\nv_addc_co_u32 v9, vcc, 0, v9, vcc")
    a("s_mov_b64 exec, -1\ns_cmp_ge_u32 s3, 4\ns_cbranch_scc1 L_sp_noffn")
    srd(12, 52, 1376 * 1024)
    a(f"""
    s_mul_i32 s7, s98, {48*1024}
    s_lshl_b32 s29, s3, 8
    s_add_u32 s7, s7, s29
    v_add_u32 v7, s7, v5
    s_mov_b32 s29, 0
    """)
    for i in range(12):
        thr()
        if i: a("s_add_u32 s29, s29, 4096")
        a(f"buffer_load_dwordx4 v[{F2+4*i}:{F2+4*i+3}], v7, s[12:15], s29 offen {cfg.nt_w}")
    a("L_sp_noffn:")
    ts(2)
    srd(12, 36, 1024)
    a(f"""
    s_lshl_b32 s7, s3, 6
    v_add_u32 v7, s7, v6
    v_lshlrev_b32 v8, 1, v7
    v_lshlrev_b32 v9, 2, v7
    v_add_u32 v9, {W_RM}, v9
    v_and_b32 v10, 3, v0
    s_lshl_b32 s7, s98, 6
    s_add_u32 s7, s7, {W_RM + 6144}
    v_lshl_add_u32 v11, v10, 4, s7
    s_movk_i32 s29, 4096
    buffer_load_ushort v16, v8, s[12:15], 0 offen
    """)
    poll("""buffer_load_dword v17, v9, s[20:23], 0 offen sc1
    buffer_load_dword v18, v9, s[20:23], 0 offen offset:2048 sc1
    buffer_load_dword v19, v9, s[20:23], s29 offen sc1
    buffer_load_dwordx4 v[20:23], v11, s[20:23], 0 offen sc1""", list(range(17, 24)), "s25", 0xffff, 28)
    ts(3)
    a("v_lshlrev_b32 v16, 16, v16")
    for k in range(17, 24): a(f"v_and_b32 v{k}, s28, v{k}")
    a("v_add_f32 v19, 1.0, v19")
    rb1(19, 19)
    a(f"""
    v_min_u32 v12, 2, v3
    s_lshr_b32 s7, s3, 1
    s_lshl_b32 s7, s7, 12
    s_and_b32 s29, s3, 1
    s_lshl_b32 s29, s29, 8
    s_add_u32 s7, s7, s29
    s_lshl_b32 s29, s4, 14
    s_add_u32 s7, s7, s29
    s_add_u32 s7, s7, {W_OB}
    v_lshlrev_b32 v13, 4, v4
    v_lshl_add_u32 v7, v3, 9, v13
    v_add_u32 v7, s7, v7
    v_lshl_add_u32 v12, v12, 9, v13
    s_add_u32 s7, s7, 2048
    v_add_u32 v12, s7, v12
    s_mov_b32 s64, -1
    s_mov_b32 s65, 0xffff
    s_lshl_b32 s7, s3, 9
    v_lshlrev_b32 v8, 5, v4
    v_lshl_add_u32 v8, v3, 4, v8
    v_add_u32 v8, s7, v8
    v_and_b32 v14, 31, v0
    v_lshrrev_b32 v15, 5, v0
    v_lshlrev_b32 v9, 11, v15
    v_lshl_add_u32 v9, v14, 4, v9
    s_lshl_b32 s7, s3, 14
    s_lshl_b32 s29, s4, 11
    s_add_u32 s7, s7, s29
    s_lshl_b32 s29, s97, 9
    s_add_u32 s7, s7, s29
    s_add_u32 s7, s7, {W_YB}
    v_lshlrev_b32 v10, 3, v15
    v_lshl_add_u32 v10, v14, 4, v10
    v_add_u32 v10, s7, v10
    s_lshl_b32 s7, s4, 14
    s_lshl_b32 s29, s3, 8
    s_add_u32 s7, s7, s29
    s_add_u32 s7, s7, {W_YB}
    v_lshl_add_u32 v11, v3, 11, v13
    v_add_u32 v11, s7, v11
    s_movk_i32 s35, 8192
    """)
    poll("buffer_load_dwordx4 v[40:43], v7, s[20:23], 0 offen sc1\nbuffer_load_dwordx4 v[44:47], v12, s[20:23], 0 offen sc1", list(range(40, 48)), "s26", 15, 48)
    ts(4)
    for k in range(4): a(f"v_cndmask_b32 v{44+k}, 0, v{44+k}, s[64:65]")
    reduce4(40)
    a("v_cvt_pk_bf16_f32 v40, v40, v40")
    vtrick(16, WO, lambda i: (40, i), 24, 32, 44)
    a(f"""
    s_mov_b64 exec, 0xffffffff
    s_nop 7
    ds_write_b128 v8, v[44:47] offset:{L_Y}
    s_mov_b64 exec, -1
    s_waitcnt lgkmcnt(0)
    s_barrier
    """)
    for k in range(4): a(f"ds_read_b128 v[{40+4*k}:{43+4*k}], v9 offset:{L_Y+512*k}")
    a("s_waitcnt lgkmcnt(0)")
    sum4swap(40)
    tag8([40, 41])
    a("buffer_store_dwordx2 v[40:41], v10, s[20:23], 0 offen sc1")
    ts(5)
    poll("buffer_load_dwordx4 v[44:47], v11, s[20:23], 0 offen sc1\nbuffer_load_dwordx4 v[48:51], v11, s[20:23], s35 offen sc1", list(range(44, 52)), "s26", 15, 52, cfg.sleep2)
    ts(6)
    reduce4(44)
    rb1(44, 44)
    a("v_mul_f32 v44, v17, v44")
    rb1(44, 44)
    a("v_add_f32 v44, v16, v44")
    rb1(44, 44)
    a(f"""v_mul_f32 v45, v44, v44
    v_mov_b32 v46, v44
    s_lshl_b32 s7, s3, 8
    v_lshl_add_u32 v48, v6, 2, s7
    ds_write_b32 v48, v44 offset:{L_X1}""")
    reduce_steps("v_add_f32", [46, 45], [48, 49], FULL)
    a(f"""
    s_lshl_b32 s29, s3, 3
    v_mov_b32 v48, s29
    v_mov_b32 v47, v45
    v_mov_b32 v13, 0
    ds_write_b64 v48, v[46:47] offset:{L_ST}
    s_waitcnt lgkmcnt(0)
    s_barrier
    s_cmp_ge_u32 s98, 29
    s_cbranch_scc1 L_sp_final
    """)
    for k in range(4): a(f"ds_read_b128 v[{48+4*k}:{51+4*k}], v13 offset:{L_ST+16*k}")
    a(f"s_mov_b32 s29, 0x3b000000\ns_mov_b32 s7, {hex(EPS)}\ns_waitcnt lgkmcnt(0)")
    a("""v_pk_add_f32 v[48:49], v[48:49], v[50:51]
    v_pk_add_f32 v[52:53], v[52:53], v[54:55]
    v_pk_add_f32 v[56:57], v[56:57], v[58:59]
    v_pk_add_f32 v[60:61], v[60:61], v[62:63]
    v_pk_add_f32 v[48:49], v[48:49], v[52:53]
    v_pk_add_f32 v[56:57], v[56:57], v[60:61]
    v_pk_add_f32 v[48:49], v[48:49], v[56:57]
    v_mul_f32 v48, s29, v48
    v_mul_f32 v49, s29, v49
    v_fma_f32 v49, -v48, v48, v49
    v_max_f32 v49, 0, v49
    """)
    rb2(48, 49, 48, 49, 50)
    a("v_add_f32 v49, s7, v49")
    rb1(49, 49)
    a("v_sqrt_f32 v49, v49\nv_sub_f32 v44, v44, v48")
    rb1(49, 49); rb1(44, 44)
    a("v_rcp_f32 v49, v49\nv_mul_f32 v44, v44, v49")
    rb1(44, 44)
    a("v_mul_f32 v44, v44, v19")
    rb1(44, 44)
    a("v_add_f32 v44, v44, v18\nv_cvt_pk_bf16_f32 v40, v44, v44")
    vtrick(16, F1, lambda i: (40, i), 24, 32, 44)
    a(f"""
    s_mov_b64 exec, 0xffffffff
    s_nop 7
    ds_write_b128 v8, v[44:47] offset:{L_G}
    s_mov_b64 exec, -1
    s_waitcnt lgkmcnt(0)
    s_barrier
    """)
    ts(7)
    a("s_cmp_ge_u32 s3, 4\ns_cbranch_scc1 L_sp_final\nv_lshlrev_b32 v7, 2, v6")
    for w in range(8): a(f"ds_read_b32 v{40+w}, v7 offset:{L_G+512*w}\nds_read_b32 v{48+w}, v7 offset:{L_G+512*w+256}")
    a(f"""
    s_lshl_b32 s7, s98, 11
    s_add_u32 s7, s7, {W_ZB}
    v_add_u32 v8, s7, v8
    s_mov_b32 s7, {NLOG2E}
    s_waitcnt lgkmcnt(0)
    v_pk_add_f32 v[40:41], v[40:41], v[42:43]
    v_pk_add_f32 v[44:45], v[44:45], v[46:47]
    v_pk_add_f32 v[48:49], v[48:49], v[50:51]
    v_pk_add_f32 v[52:53], v[52:53], v[54:55]
    v_pk_add_f32 v[40:41], v[40:41], v[44:45]
    v_pk_add_f32 v[48:49], v[48:49], v[52:53]
    v_add_f32 v40, v40, v41
    v_add_f32 v41, v48, v49
    """)
    rb2(40, 41, 40, 41, 42)
    silu(40, 40, 42)
    rb1(40, 40)
    a("v_mul_f32 v40, v40, v41\nv_cvt_pk_bf16_f32 v40, v40, v40")
    vtrick(12, F2, lambda i: (40, i), 24, 32, 44)
    tag8([44, 45, 46, 47])
    a("""
    s_mov_b64 exec, 0xffffffff
    buffer_store_dwordx4 v[44:47], v8, s[20:23], 0 offen sc1
    """)
    ts(8)
    a("s_branch L_exit")
    a(f"""
    L_sp_final:
    s_cmp_lg_u32 s3, 4
    s_cbranch_scc1 L_exit
    v_and_b32 v10, 3, v0
    s_lshl_b32 s7, s98, 6
    v_lshl_add_u32 v11, v10, 4, s7
    ds_read_b128 v[16:19], v11 offset:{L_X1}
    v_lshrrev_b32 v12, 2, v0
    v_add_u32 v13, 16, v12
    v_cmp_gt_u32 s[64:65], 29, v13
    v_min_u32 v13, 28, v13
    v_add_u32 v11, {W_ZB}, v11
    v_lshl_add_u32 v12, v12, 11, v11
    v_lshl_add_u32 v13, v13, 11, v11
    s_lshl_b32 s7, s98, 5
    v_lshl_add_u32 v14, v10, 3, s7
    """)
    srd(12, 58, 1024)
    poll("buffer_load_dwordx4 v[40:43], v12, s[20:23], 0 offen sc1\nbuffer_load_dwordx4 v[44:47], v13, s[20:23], 0 offen sc1", list(range(40, 48)), "s26", 15, 48, cfg.sleep2)
    ts(9)
    for k in range(4): a(f"v_cndmask_b32 v{44+k}, 0, v{44+k}, s[64:65]")
    for k in range(4): a(f"v_add_f32 v{40+k}, v{40+k}, v{44+k}")
    reduce_steps("v_add_f32", [40, 41, 42, 43], [44, 45, 46, 47], ["r4", "r8", "p16", "p32"])
    a("s_waitcnt lgkmcnt(0)")
    rb2(40, 41, 40, 41, 44); rb2(42, 43, 42, 43, 45)
    for k in range(4): a(f"v_mul_f32 v{40+k}, v{20+k}, v{40+k}")
    rb2(40, 41, 40, 41, 44); rb2(42, 43, 42, 43, 45)
    for k in range(4): a(f"v_add_f32 v{40+k}, v{16+k}, v{40+k}")
    if cfg.perturb:
        f = struct.unpack('<I', struct.pack('<f', cfg.perturb))[0]
        a(f"s_mov_b32 s7, {hex(f)}")
        for k in range(4): a(f"v_mul_f32 v{40+k}, s7, v{40+k}")
    a("""
    v_cvt_pk_bf16_f32 v40, v40, v41
    v_cvt_pk_bf16_f32 v41, v42, v43
    s_mov_b64 exec, 15
    buffer_store_dwordx2 v[40:41], v14, s[12:15], 0 offen
    s_cmp_lg_u32 s98, 0
    s_cbranch_scc1 L_exit
    v_mov_b32 v42, s24
    v_mov_b32 v43, 0
    s_mov_b64 exec, 1
    buffer_store_dword v42, v43, s[20:23], 0 offen sc1
    """)
    a("L_exit:")
    if cfg.diag:
        a("s_mov_b64 exec, 1\ns_waitcnt lgkmcnt(0)")
        srd(20, 60, WS_SIZE)
        a(f"s_lshl_b32 s29, s2, 3\ns_add_u32 s29, s29, s3\ns_lshl_b32 s29, s29, 6\ns_add_u32 s29, s29, {W_DBG}\nv_mov_b32 v1, s29")
        for i in range(12):
            a(f"v_mov_b32 v2, s{70+2*i}\nbuffer_store_dword v2, v1, s[20:23], 0 offen offset:{4*i}")
        a("s_memrealtime s[70:71]\ns_getreg_b32 s30, hwreg(HW_REG_XCC_ID, 0, 4)\ns_waitcnt lgkmcnt(0)\nv_mov_b32 v2, s70\nv_mov_b32 v3, s30\nbuffer_store_dword v2, v1, s[20:23], 0 offen offset:48\nbuffer_store_dword v3, v1, s[20:23], 0 offen offset:52")
    a("L_end:\ns_endpgm")
    body, added = hazard.fix("L_start:\n" + a.text())
    return wrap(body, 256, 512, LDS_SIZE, 256, 256)

if __name__ == "__main__":
    cfg = Cfg()
    for kv in sys.argv[2:]:
        k, v = kv.split("=")
        cur = getattr(cfg, k)
        setattr(cfg, k, type(cur)(int(v)) if isinstance(cur, bool) else type(cur)(v))
    open(sys.argv[1], "w").write(gen(cfg))
```
